```python
import torch

def _softmax(x, axis=-1):
    return torch.softmax(x, dim=axis)
def _gelu(x):
    return torch.nn.functional.gelu(x, approximate="tanh")
def _silu(x):
    return torch.nn.functional.silu(x)
def _sigmoid(x):
    return torch.sigmoid(x)
def _layernorm(x, axis=-1, eps=1e-5):
    m = x.mean(dim=axis, keepdim=True)
    v = x.var(dim=axis, keepdim=True, unbiased=False)
    return (x - m) / torch.sqrt(v + eps)
def _scatter_add(tgt, idx, src, axis=0):
    return tgt.clone().index_add_(axis, idx, src)
def _segment_sum(src, seg, n):
    out = torch.zeros((n,) + src.shape[1:], dtype=src.dtype)
    return out.index_add_(0, seg, src)
def _pad(x, pw):
    flat = tuple(v for pair in reversed(pw) for v in pair)
    return torch.nn.functional.pad(x, flat)

kernel_name = 'gated_mix__ssm_conv_s4__glu_gated_glu__prompt'

def setup_inputs():

    _w = (lambda a: (lambda t: t.to(torch.bfloat16) if t.is_floating_point() else t)(torch.as_tensor(a)))
    def _A_setup():
        B, L, D, N = 1, 2048, 448, 256
        A_re = -(lambda _x: torch.exp(torch.as_tensor(_x)))((lambda *s: torch.randn(*s, dtype=torch.bfloat16) * 6.4)(D, N))
        A_im = torch.pi * (lambda *s: torch.randn(*s, dtype=torch.bfloat16) * 0.1)(D, N)
        B_re = (lambda *s: torch.randn(*s, dtype=torch.bfloat16) * 0.2)(D, N)
        B_im = (lambda *s: torch.randn(*s, dtype=torch.bfloat16) * 0.2)(D, N)
        C_re = (lambda *s: torch.randn(*s, dtype=torch.bfloat16) * 0.2)(D, N)
        C_im = (lambda *s: torch.randn(*s, dtype=torch.bfloat16) * 0.2)(D, N)
        log_dt = (lambda *s: torch.randn(*s, dtype=torch.bfloat16) * 0.1)(D) * 0.5 - 4.0
        Dskip = (lambda *s: torch.randn(*s, dtype=torch.bfloat16) * 0.1)(D)
        return {
            "u": _w((lambda *s: torch.randn(*s, dtype=torch.bfloat16) * 0.05)(B, L, D)),
            "A_re": _w(A_re),
            "A_im": _w(A_im),
            "B_re": _w(B_re),
            "B_im": _w(B_im),
            "C_re": _w(C_re),
            "C_im": _w(C_im),
            "log_dt": _w(log_dt),
            "Dskip": _w(Dskip),
        }
    _A_in = _A_setup()

    def _B_setup():
        B, S, D, F = 1, 2048, 448, 1792
        return {
            "x": _w((lambda *s: torch.randn(*s, dtype=torch.bfloat16) * 0.05)(B, S, D)),
            "w_gate": _w((lambda *s: torch.randn(*s, dtype=torch.bfloat16) * 0.4)(D, F)),
            "w_up": _w((lambda *s: torch.randn(*s, dtype=torch.bfloat16) * 0.05)(D, F)),
            "w_down": _w((lambda *s: torch.randn(*s, dtype=torch.bfloat16) * 0.05)(F, D)),
        }
    _B_in = _B_setup()

    return {
        "A_u": _A_in["u"],
        "A_A_re": _A_in["A_re"],
        "A_A_im": _A_in["A_im"],
        "A_B_re": _A_in["B_re"],
        "A_B_im": _A_in["B_im"],
        "A_C_re": _A_in["C_re"],
        "A_C_im": _A_in["C_im"],
        "A_log_dt": _A_in["log_dt"],
        "A_Dskip": _A_in["Dskip"],
        "B_x": _B_in["x"],
        "B_w_gate": _B_in["w_gate"],
        "B_w_up": _B_in["w_up"],
        "B_w_down": _B_in["w_down"],
        "gate_w": _w((lambda *s: torch.randn(*s, dtype=torch.bfloat16) * 0.05)(448) * 16.0),
    }

def reference(A_u, A_A_re, A_A_im, A_B_re, A_B_im, A_C_re, A_C_im, A_log_dt, A_Dskip, B_x, B_w_gate, B_w_up, B_w_down, gate_w):
    def _A_ref(u, A_re, A_im, B_re, B_im, C_re, C_im, log_dt, Dskip):
        Bsz, L, D = u.shape
        dt = torch.exp(log_dt)[:, None]
        A = A_re + 1j * A_im
        Bc = B_re + 1j * B_im
        Cc = C_re + 1j * C_im
        logdA = dt * A
        dB = dt * Bc
        l = (lambda x, dt: x.to(dt))(torch.arange(L), A_re.dtype)
        P = torch.exp(logdA[:, :, None] * l[None, None, :])
        K = torch.einsum("dn,dnl,dn->dl", Cc, P, dB).real
        L2 = 2 * L
        Kp = _pad(K, ((0, 0), (0, L)))
        up = (lambda x, *d: x.permute(*d))(u, 0, 2, 1)
        up = _pad(up, ((0, 0), (0, 0), (0, L)))
        Kf = (lambda x, axes=(-2,-1): torch.fft.rfft2(x.float(), dim=axes))(Kp[:, None, :], axes=(-2, -1))
        Uf = (lambda x, axes=(-2,-1): torch.fft.rfft2(x.float(), dim=axes))(up[:, :, None, :], axes=(-2, -1))
        Yf = Uf * Kf[None, :, :, :]
        y = (lambda x, s, axes=(-2,-1): torch.fft.irfft2(x, s=s, dim=axes).to(torch.bfloat16))(Yf, (1, L2), axes=(-2, -1))[:, :, 0, :L]
        y = (lambda x, *d: x.permute(*d))(y, 0, 2, 1) + u * Dskip[None, None, :]
        return y

    def _B_ref(x, w_gate, w_up, w_down):
        g = torch.einsum("bsd,df->bsf", x, w_gate)
        u = torch.einsum("bsd,df->bsf", x, w_up)
        h = _sigmoid(g) * u
        return torch.einsum("bsf,fd->bsd", h, w_down)

    x = A_u
    g = _sigmoid((x * gate_w).sum(-1, keepdims=True))
    a = _A_ref(x, A_A_re, A_A_im, A_B_re, A_B_im, A_C_re, A_C_im, A_log_dt, A_Dskip)
    b = _B_ref(x, B_w_gate, B_w_up, B_w_down)
    return g * a + (1 - g) * b
```

```python
class Asm:
    def __init__(self):
        self.l = []
        self.nlab = 0
    def __call__(self, s):
        for line in s.split("\n"):
            line = line.strip()
            if line:
                self.l.append(("" if line.endswith(":") else "    ") + line)
    def label(self, base="L"):
        self.nlab += 1
        return f"{base}_{self.nlab}"
    def text(self):
        return "\n".join(self.l) + "\n"

def vr(a, n=1):
    return f"v{a}" if n == 1 else f"v[{a}:{a+n-1}]"
def sr(a, n=1):
    return f"s{a}" if n == 1 else f"s[{a}:{a+n-1}]"

KA = dict(u=0, are=8, aim=16, bre=24, bim=32, cre=40, cim=48, logdt=56, dskip=64, bx=72,
          wg=80, wu=88, wd=96, gw=104, out=112, dbg=120, ws=128)

L, D, N, F = 2048, 448, 256, 1792
WS_HP = 0
SZ_HP = 64 * 112 * 1024
WS_WP = WS_HP + SZ_HP
SZ_WP = 14 * 112 * 1024
WS_UT = WS_WP + SZ_WP
SZ_UT = 448 * 4096
WS_AT = WS_UT + SZ_UT
SZ_AT = 448 * 4096
KCS = 4160
KIMG = 4 * KCS
WS_KI = WS_AT + SZ_AT
SZ_KI = 448 * KIMG
WS_G = WS_KI + SZ_KI
SZ_G = 8192
WS_ST = (WS_G + SZ_G + 4095) // 4096 * 4096
SZ_ST = 1 << 20
WS_END = WS_ST + SZ_ST

def srd(a, d, base_s, size, off=0):
    if off:
        a(f"s_add_u32 s{d}, s{base_s}, {off}")
        a(f"s_addc_u32 s{d+1}, s{base_s+1}, 0")
    else:
        a(f"s_mov_b32 s{d}, s{base_s}")
        a(f"s_mov_b32 s{d+1}, s{base_s+1}")
    a(f"s_mov_b32 s{d+2}, {size}")
    a(f"s_mov_b32 s{d+3}, 0x20000")

def kernel_head(name):
    return f""".globl {name}
.p2align 8
.type {name},@function
{name}:
"""

def kernel_desc(name, vgpr, sgpr=96, accum=None):
    if accum is None:
        accum = (vgpr + 3) // 4 * 4
    return f""".p2align 6
.amdhsa_kernel {name}
  .amdhsa_next_free_vgpr {vgpr}
  .amdhsa_next_free_sgpr {sgpr}
  .amdhsa_accum_offset {accum}
  .amdhsa_group_segment_fixed_size 0
  .amdhsa_kernarg_size 136
  .amdhsa_user_sgpr_count 2
  .amdhsa_user_sgpr_kernarg_segment_ptr 1
  .amdhsa_system_sgpr_workgroup_id_x 1
.end_amdhsa_kernel
"""
```

```python
import sys
sys.path.insert(0, "gen")
from common import *

STAMPS = "--stamps" in sys.argv
PK = "--nopk" not in sys.argv
LOG2E = 0x3fb8aa3b
NLOG2E = 0xbfb8aa3b

class St:
    def __init__(self, a, kidx):
        self.a = a; self.n = 0; self.kidx = kidx
    def __call__(self):
        if STAMPS:
            self.a(f"s_memrealtime s[{64+2*self.n}:{65+2*self.n}]")
            self.a("s_waitcnt lgkmcnt(0)")
            self.n += 1
    def flush(self, s_ws, s_wave, vt):
        if not STAMPS: return
        a = self.a
        a(f"s_lshl_b32 s90, s2, 4")
        a(f"s_add_u32 s90, s90, s{s_wave}")
        a(f"s_lshl_b32 s90, s90, 6")
        a(f"s_add_u32 s90, s90, {WS_ST + self.kidx * 262144}")
        a(f"s_add_u32 s92, s{s_ws}, s90")
        a(f"s_addc_u32 s93, s{s_ws+1}, 0")
        a(f"v_mov_b32 v{vt}, 0")
        for i in range(self.n):
            a(f"v_mov_b32 v{vt+1}, s{64+2*i}")
            a(f"global_store_dword v{vt}, v{vt+1}, s[92:93] offset:{4*i}")
        a(f"s_getreg_b32 s90, hwreg(HW_REG_HW_ID)")
        a(f"v_mov_b32 v{vt+1}, s90")
        a(f"global_store_dword v{vt}, v{vt+1}, s[92:93] offset:56")
        a(f"s_getreg_b32 s90, hwreg(HW_REG_XCC_ID)")
        a(f"v_mov_b32 v{vt+1}, s90")
        a(f"global_store_dword v{vt}, v{vt+1}, s[92:93] offset:60")

def div7(a, sq, sr_, sx, st):
    a(f"s_mul_i32 s{sq}, s{sx}, 9363")
    a(f"s_lshr_b32 s{sq}, s{sq}, 16")
    a(f"s_mul_i32 s{st}, s{sq}, 7")
    a(f"s_sub_u32 s{sr_}, s{sx}, s{st}")

def gen_j1():
    a = Asm(); st = St(a, 1)
    a("s_cmp_ge_u32 s2, 224")
    a("s_cbranch_scc1 J1_end")
    st()
    a(f"s_load_dwordx2 s[4:5], s[0:1], {KA['u']}")
    a(f"s_load_dwordx4 s[8:11], s[0:1], {KA['wg']}")
    a(f"s_load_dwordx2 s[6:7], s[0:1], {KA['ws']}")
    a("s_and_b32 s30, s2, 7")
    a("s_lshr_b32 s31, s2, 3")
    div7(a, 32, 33, 31, 34)
    a("s_lshr_b32 s34, s30, 1")
    a("s_lshl_b32 s34, s34, 2")
    a("s_add_u32 s32, s32, s34")
    a("s_and_b32 s34, s30, 1")
    a("s_mul_i32 s34, s34, 7")
    a("s_add_u32 s33, s33, s34")
    a("v_lshrrev_b32 v1, 6, v0")
    a("v_and_b32 v2, 63, v0")
    a("v_readfirstlane_b32 s28, v1")
    a("v_lshrrev_b32 v3, 3, v2")
    a("v_lshl_add_u32 v3, v1, 3, v3")
    a("v_mul_u32_u24 v3, 896, v3")
    a("v_lshrrev_b32 v4, 4, v2")
    a("v_lshl_add_u32 v5, v1, 2, v4")
    a("v_xor_b32 v5, v5, v2")
    a("v_and_b32 v5, 7, v5")
    a("v_lshl_add_u32 v8, v5, 4, v3")
    a("v_lshl_add_u32 v3, v1, 2, v4")
    a("v_mul_u32_u24 v3, 3584, v3")
    a("v_lshlrev_b32 v5, 2, v4")
    a("v_xor_b32 v5, v5, v2")
    a("v_and_b32 v5, 15, v5")
    a("v_lshl_add_u32 v9, v5, 4, v3")
    a("s_waitcnt lgkmcnt(0)")
    a("s_mul_i32 s34, s32, 114688")
    a("s_add_u32 s12, s4, s34"); a("s_addc_u32 s13, s5, 0")
    a("s_mov_b32 s14, 114688"); a("s_mov_b32 s15, 0x20000")
    a("s_lshl_b32 s34, s33, 8")
    a("s_add_u32 s16, s8, s34"); a("s_addc_u32 s17, s9, 0")
    a(f"s_sub_u32 s18, {448*3584}, s34"); a("s_mov_b32 s19, 0x20000")
    a("s_add_u32 s20, s10, s34"); a("s_addc_u32 s21, s11, 0")
    a("s_mov_b32 s22, s18"); a("s_mov_b32 s23, 0x20000")
    srd(a, 24, 6, SZ_HP, WS_HP)
    a("s_lshl_b32 s29, s28, 10")
    q = []
    XB = 65536
    def dma_x(j):
        for half in range(2):
            a(f"s_add_u32 m0, s29, {XB + (j % 3) * 16384 + half * 8192}")
            a(f"s_mov_b32 s35, {j * 128 + half * 57344}")
            a(f"buffer_load_dwordx4 v8, s[12:15], s35 offen lds")
            q.append(("x", j))
    def dma_w1(s, m):
        a(f"s_add_u32 m0, s29, {(s % 4) * 16384 + m * 8192}")
        a(f"s_mov_b32 s35, {s * 32 * 3584}")
        a(f"buffer_load_dwordx4 v9, s[{16+4*m}:{19+4*m}], s35 offen lds")
        q.append(("w", s))
    def dma_w(s):
        dma_w1(s, 0); dma_w1(s, 1)
    dma_x(0); dma_w(0); dma_w(1); dma_x(1); dma_w(2); dma_w(3); dma_x(2)
    a("v_and_b32 v3, 31, v2")
    a("v_lshrrev_b32 v4, 5, v2")
    a("v_and_b32 v5, 1, v1")
    a("v_lshl_add_u32 v5, v5, 6, v3")
    a("v_lshlrev_b32 v5, 7, v5")
    a(f"v_add_u32 v5, {XB}, v5")
    a("v_bfe_u32 v6, v3, 1, 3")
    a("v_xor_b32 v6, v6, v4")
    for ks in range(4):
        a(f"v_xor_b32 v7, {2*ks}, v6")
        a(f"v_lshl_add_u32 v{10+ks}, v7, 4, v5")
    a("v_bfe_u32 v3, v2, 2, 2")
    a("v_lshl_add_u32 v5, v4, 3, v3")
    a("v_lshlrev_b32 v5, 8, v5")
    a("v_lshrrev_b32 v6, 1, v1")
    a("v_xor_b32 v6, v6, v3")
    a("v_lshl_add_u32 v5, v6, 6, v5")
    a("v_bfe_u32 v6, v2, 4, 1")
    a("v_lshl_add_u32 v5, v6, 5, v5")
    a("v_and_b32 v6, 3, v2")
    a("v_lshl_add_u32 v14, v6, 3, v5")
    a("v_lshlrev_b32 v15, 4, v2")
    FB = [16, 32]; ACC = 48
    def reads(kk):
        s = kk >> 1; f = FB[kk & 1]
        xs = ((s >> 1) % 3) * 16384
        wsl = (s % 4) * 16384 + (kk & 1) * 4096
        r = []
        r.append(f"ds_read_b64_tr_b16 {vr(f+8,2)}, v14 offset:{wsl}")
        r.append(f"ds_read_b64_tr_b16 {vr(f+10,2)}, v14 offset:{wsl+1024}")
        r.append(f"ds_read_b128 {vr(f,4)}, v{10+(kk&3)} offset:{xs}")
        r.append(f"ds_read_b64_tr_b16 {vr(f+12,2)}, v14 offset:{wsl+8192}")
        r.append(f"ds_read_b64_tr_b16 {vr(f+14,2)}, v14 offset:{wsl+8192+1024}")
        r.append(f"ds_read_b128 {vr(f+4,4)}, v{10+(kk&3)} offset:{xs+4096}")
        return r
    def mfma(kk, i):
        f = FB[kk & 1]
        tt, m = i >> 1, i & 1
        d = ACC + (2 * tt + m) * 16
        c = "0" if kk == 0 else vr(d, 16)
        return f"v_mfma_f32_32x32x16_bf16 {vr(d,16)}, {vr(f+8+4*m,4)}, {vr(f+4*tt,4)}, {c}"
    def wait_for(tags):
        last = max(i for i, t in enumerate(q) if t in tags) if any(t in tags for t in q) else -1
        n = len(q) - 1 - last
        del q[:last + 1]
        return n
    n = wait_for({("x", 0), ("w", 0)})
    a(f"s_waitcnt vmcnt({n})")
    a("s_barrier")
    st()
    for r in reads(0): a(r)
    for s in range(14):
        rd = reads(2 * s + 1)
        a("s_waitcnt lgkmcnt(0)")
        a(mfma(2*s, 0)); [a(r) for r in rd[:3]]
        a(mfma(2*s, 1)); [a(r) for r in rd[3:]]
        a(mfma(2*s, 2)); a(mfma(2*s, 3))
        if s < 13:
            n = wait_for({("x", (s + 1) >> 1), ("w", s + 1)})
            a(f"s_waitcnt vmcnt({n}) lgkmcnt(0)")
            a("s_barrier")
            rd = reads(2 * s + 2)
            a(mfma(2*s+1, 0)); [a(r) for r in rd[:3]]
            a(mfma(2*s+1, 1)); [a(r) for r in rd[3:]]
            a(mfma(2*s+1, 2))
            if s + 4 < 14: dma_w(s + 4)
            a(mfma(2*s+1, 3))
            if (s & 1) and (s >> 1) + 3 < 7: dma_x((s >> 1) + 3)
        else:
            a("s_waitcnt lgkmcnt(0)")
            for i in range(4): a(mfma(2*s+1, i))
    st()
    a("s_and_b32 s34, s28, 1")
    a("s_lshl_b32 s34, s34, 1")
    a("s_lshl_b32 s35, s32, 2")
    a("s_add_u32 s34, s34, s35")
    a("s_mul_i32 s34, s34, 112")
    a("s_lshl_b32 s35, s33, 3")
    a("s_add_u32 s34, s34, s35")
    a("s_and_b32 s35, s28, 6")
    a("s_add_u32 s34, s34, s35")
    a("s_lshl_b32 s34, s34, 10")
    a(f"s_add_u32 s35, s34, {112*1024}")
    a("s_nop 7")
    for tt in range(2):
        G = ACC + 2 * tt * 16; U = G + 16
        T = 16
        for j in range(2):
            for e in range(8): a(f"v_mul_f32 v{T+e}, 0x{NLOG2E:x}, v{G+8*j+e}")
            for e in range(8): a(f"v_exp_f32 v{T+e}, v{T+e}")
            for e in range(8): a(f"v_add_f32 v{T+e}, 1.0, v{T+e}")
            for e in range(8): a(f"v_rcp_f32 v{T+e}, v{T+e}")
            for e in range(8): a(f"v_mul_f32 v{T+e}, v{T+e}, v{U+8*j+e}")
            P = 32 + (2 * tt + j) * 4
            for e in range(4): a(f"v_cvt_pk_bf16_f32 v{P+e}, v{T+2*e}, v{T+2*e+1}")
            a(f"buffer_store_dwordx4 {vr(P,4)}, v15, s[24:27], s{34+tt} offen offset:{j*1024}")
    st()
    a("s_waitcnt vmcnt(0)")
    st()
    st.flush(6, 28, 16)
    a("J1_end:")
    a("s_endpgm")
    return a.text(), 112, 114688

def gen_j4():
    a = Asm(); st = St(a, 3)
    a("s_cmp_ge_u32 s2, 224")
    a("s_cbranch_scc1 J4_end")
    st()
    a(f"s_load_dwordx2 s[4:5], s[0:1], {KA['out']}")
    a(f"s_load_dwordx2 s[6:7], s[0:1], {KA['ws']}")
    a("s_and_b32 s30, s2, 7")
    a("s_lshr_b32 s31, s2, 3")
    div7(a, 32, 33, 31, 34)
    a("s_lshl_b32 s34, s30, 2")
    a("s_add_u32 s32, s32, s34")
    a("v_lshrrev_b32 v1, 6, v0")
    a("v_and_b32 v2, 63, v0")
    a("v_readfirstlane_b32 s28, v1")
    a("v_lshlrev_b32 v3, 4, v2")
    a("s_lshr_b32 s36, s28, 1")
    a("s_and_b32 s37, s28, 1")
    a(f"s_mul_i32 s38, s28, {28*1024}")
    for loc in range(2):
        a(f"s_xor_b32 s34, s36, {loc}")
        a("s_lshl_b32 s35, s33, 1")
        a("s_add_u32 s34, s34, s35")
        a(f"s_mul_i32 s34, s34, {112*1024}")
        a("s_add_u32 s34, s34, s38")
        a(f"v_add_u32 v{4+loc}, s34, v3")
        a(f"s_xor_b32 s34, s37, {loc}")
        a("s_lshl_b32 s35, s32, 1")
        a("s_add_u32 s34, s34, s35")
        a(f"s_mul_i32 s34, s34, {112*1024}")
        a("s_add_u32 s34, s34, s38")
        a(f"v_add_u32 v{6+loc}, s34, v3")
    for i in range(1, 7): a(f"s_mov_b32 s{40+i}, {i*4096}")
    a("s_waitcnt lgkmcnt(0)")
    srd(a, 12, 6, SZ_HP, WS_HP)
    srd(a, 16, 6, SZ_WP, WS_WP)
    srd(a, 20, 6, SZ_AT, WS_AT)
    srd(a, 24, 6, SZ_G, WS_G)
    srd(a, 8, 4, 2048*896)
    ACC = 16; RING = 80; NR = 11
    def loads(kk):
        f = RING + (kk % NR) * 16
        so = "0" if kk < 4 else f"s{40 + (kk >> 2)}"
        off = (kk & 3) * 1024
        a(f"buffer_load_dwordx4 {vr(f,4)}, v4, s[16:19], {so} offen offset:{off}")
        a(f"buffer_load_dwordx4 {vr(f+8,4)}, v6, s[12:15], {so} offen offset:{off}")
        a(f"buffer_load_dwordx4 {vr(f+12,4)}, v7, s[12:15], {so} offen offset:{off}")
        a(f"buffer_load_dwordx4 {vr(f+4,4)}, v5, s[16:19], {so} offen offset:{off}")
    a("s_lshl_b32 s34, s33, 1"); a("s_add_u32 s34, s34, s36"); a("s_lshl_b32 s34, s34, 17")
    a("s_lshl_b32 s35, s32, 1"); a("s_add_u32 s35, s35, s37")
    a("s_lshl_b32 s39, s35, 6")
    a("s_add_u32 s34, s34, s39")
    a("v_lshrrev_b32 v8, 2, v2")
    a("v_lshlrev_b32 v8, 12, v8")
    a("v_and_b32 v9, 3, v2")
    a("v_lshl_add_u32 v8, v9, 4, v8")
    a("s_lshl_b32 s39, s28, 11")
    a("s_add_u32 m0, s39, 49152")
    a("s_add_u32 s47, s34, 65536")
    a("buffer_load_dwordx4 v8, s[20:23], s34 offen lds")
    a("s_add_u32 m0, s39, 50176")
    a("v_and_b32 v9, 31, v2")
    a("buffer_load_dwordx4 v8, s[20:23], s47 offen lds")
    a("v_lshlrev_b32 v10, 2, v9")
    a("s_lshl_b32 s47, s35, 7")
    a("buffer_load_dword v11, v10, s[24:27], s47 offen")
    for kk in range(NR): loads(kk)
    st()
    for kk in range(28):
        issued = min(28, kk + NR)
        a(f"s_waitcnt vmcnt({(issued - kk - 1) * 4})")
        f = RING + (kk % NR) * 16
        for (x, y) in [(0, 0), (0, 1), (1, 1), (1, 0)]:
            d = ACC + (2 * x + y) * 16
            c = "0" if kk == 0 else vr(d, 16)
            a(f"v_mfma_f32_32x32x16_bf16 {vr(d,16)}, {vr(f+4*x,4)}, {vr(f+8+4*y,4)}, {c}")
        if kk + NR < 28: loads(kk + NR)
    st()
    for ql in range(1, 4):
        a(f"s_xor_b32 s34, s28, {ql}")
        a(f"s_mul_i32 s34, s34, 12288")
        a(f"s_add_u32 s34, s34, {(ql-1)*4096}")
        a(f"v_add_u32 v{11+ql}, s34, v3")
    a("s_nop 7")
    for ql in (1, 3, 2):
        for c in range(4):
            a(f"ds_write_b128 v{11+ql}, {vr(ACC+ql*16+4*c,4)} offset:{c*1024}")
    a("s_mul_i32 s34, s28, 12288")
    a("v_add_u32 v12, s34, v3")
    a("v_lshrrev_b32 v13, 5, v2")
    a("v_bfe_u32 v14, v2, 2, 2")
    a("v_lshl_add_u32 v13, v13, 2, v14")
    a("v_lshlrev_b32 v13, 6, v13")
    a("v_bfe_u32 v14, v2, 4, 1")
    a("v_lshl_add_u32 v13, v14, 5, v13")
    a("v_and_b32 v14, 3, v2")
    a("v_lshl_add_u32 v13, v14, 3, v13")
    a("s_add_u32 s34, s39, 49152")
    a("v_add_u32 v13, s34, v13")
    AV = 128
    for qd in range(4):
        a(f"ds_read_b64_tr_b16 {vr(AV+2*qd,2)}, v13 offset:{qd*512}")
    a("s_waitcnt lgkmcnt(0)")
    a("s_barrier")
    R = 80
    for sl in range(3):
        for c in range(4):
            a(f"ds_read_b128 {vr(R+sl*16+4*c,4)}, v12 offset:{sl*4096+c*1024}")
    a("v_mul_u32_u24 v14, 896, v9")
    a("v_lshrrev_b32 v15, 5, v2")
    a("v_lshl_add_u32 v14, v15, 4, v14")
    a(f"s_mul_i32 s34, s35, {32*896}")
    a("s_lshl_b32 s47, s33, 1"); a("s_add_u32 s47, s47, s36"); a("s_lshl_b32 s47, s47, 6")
    a("s_add_u32 s34, s34, s47")
    a("v_sub_f32 v15, 1.0, v11")
    a("v_cvt_pk_bf16_f32 v15, v15, v15")
    a("v_and_b32 v15, 0xffff0000, v15")
    GA = 136
    for qd in range(4):
        for h in range(2):
            src = AV + 2 * qd + h
            a(f"v_lshlrev_b32 v{GA+4*qd+2*h}, 16, v{src}")
            a(f"v_and_b32 v{GA+4*qd+2*h+1}, 0xffff0000, v{src}")
    for i in range(16): a(f"v_mul_f32 v{GA+i}, v11, v{GA+i}")
    for sl in range(3):
        a(f"s_waitcnt lgkmcnt({8-4*sl})")
        for i in range(16): a(f"v_add_f32 v{ACC+i}, v{ACC+i}, v{R+sl*16+i}")
    for i in range(16): a(f"v_fma_f32 v{GA+i}, v15, v{ACC+i}, v{GA+i}")
    O = 152
    for i in range(8): a(f"v_cvt_pk_bf16_f32 v{O+i}, v{GA+2*i}, v{GA+2*i+1}")
    a("s_nop 1")
    for jj in range(2):
        a(f"v_permlane32_swap_b32 v{O+4*jj}, v{O+4*jj+2}")
        a(f"v_permlane32_swap_b32 v{O+4*jj+1}, v{O+4*jj+3}")
    for jj in range(2):
        a(f"buffer_store_dwordx4 {vr(O+4*jj,4)}, v14, s[8:11], s34 offen offset:{jj*32}")
    a("s_waitcnt vmcnt(0)")
    st()
    st.flush(6, 28, 16)
    a("J4_end:")
    a("s_endpgm")
    return a.text(), 256, 49152 + 8192

def gen_j3():
    a = Asm(); st = St(a, 2)
    a("s_cmp_ge_u32 s2, 224")
    a("s_cbranch_scc1 J3_end")
    st()
    a(f"s_load_dwordx2 s[4:5], s[0:1], {KA['dskip']}")
    a(f"s_load_dwordx2 s[6:7], s[0:1], {KA['ws']}")
    a("v_lshrrev_b32 v1, 6, v0")
    a("v_and_b32 v2, 63, v0")
    a("v_readfirstlane_b32 s28, v1")
    a("v_lshlrev_b32 v3, 4, v2")
    a("s_lshr_b32 s36, s28, 1")
    a("s_and_b32 s37, s28, 1")
    a("s_lshl_b32 s38, s2, 1")
    a("s_add_u32 s38, s38, s36")
    a("s_lshl_b32 s34, s2, 2")
    a("s_waitcnt lgkmcnt(0)")
    a("s_load_dword s39, s[4:5], s34")
    srd(a, 12, 6, SZ_KI, WS_KI)
    srd(a, 16, 6, SZ_UT, WS_UT)
    srd(a, 20, 6, SZ_AT, WS_AT)
    CH = 17408 + 4608
    UO = 17408
    a(f"s_mul_i32 s40, s36, {CH}")
    a(f"s_mul_i32 s41, s38, {KIMG}")
    a(f"s_mul_i32 s42, s37, {9*1024}")
    a("s_add_u32 s41, s41, s42")
    a("s_add_u32 s42, s42, s40")
    a("s_lshl_b32 s43, s38, 12")
    a("s_lshl_b32 s44, s37, 11")
    a("s_add_u32 s43, s43, s44")
    a("s_add_u32 s44, s44, s40")
    a(f"s_add_u32 m0, s44, {UO+512}")
    a("s_nop 0")
    a("buffer_load_dwordx4 v3, s[16:19], s43 offen lds")
    a("buffer_load_dwordx4 v3, s[16:19], s43 offen offset:1024 lds")
    for g4 in range(3):
        a(f"s_add_u32 m0, s42, {g4*4096}")
        a(f"s_add_u32 s45, s41, {g4*4096}")
        if g4 == 2:
            a("s_cmp_eq_u32 s37, 1")
            a("s_cbranch_scc1 J3_skip9")
        for i in range(4 if g4 < 2 else 1):
            a(f"buffer_load_dwordx4 v3, s[12:15], s45 offen offset:{i*1024} lds")
    a("J3_skip9:")
    a("v_mov_b32 v8, 0")
    a("v_lshlrev_b32 v9, 2, v2")
    a("s_lshl_b32 s45, s37, 8")
    a("s_add_u32 s45, s45, s40")
    a("v_add_u32 v9, s45, v9")
    a(f"ds_write_b32 v9, v8 offset:{UO}")
    a("v_and_b32 v4, 15, v2")
    a("v_lshrrev_b32 v5, 4, v2")
    a("v_sub_u32 v6, 3, v4")
    a("v_and_b32 v6, 3, v6")
    a(f"v_mul_u32_u24 v7, {KCS-2}, v6")
    a("v_lshl_add_u32 v7, v5, 4, v7")
    a("v_lshlrev_b32 v8, 1, v4")
    a("v_sub_u32 v7, v7, v8")
    a("s_lshl_b32 s45, s37, 8")
    a("s_sub_u32 s46, s40, s45")
    a(f"s_add_u32 s47, s46, {2*2047-4064+256}")
    a("v_add_u32 v10, s47, v7")
    a("v_lshlrev_b32 v7, 5, v4")
    a("v_lshl_add_u32 v7, v5, 4, v7")
    a(f"s_add_u32 s47, s46, {UO+512-32*7}")
    a("v_add_u32 v11, s47, v7")
    a("s_waitcnt vmcnt(0) lgkmcnt(0)")
    a("s_barrier")
    st()
    ACC = 16; FA = [48, 112]; FBm = [80, 144]
    def rd(it):
        rl = 2 * it + 1
        fa = FA[it & 1]; fb = FBm[it & 1]
        r = []
        for x in range(8):
            o = 512 * (7 - x) + 32 * (7 - rl)
            r.append(f"ds_read_b64 {vr(fa+4*x,2)}, v10 offset:{o}")
            r.append(f"ds_read_b64 {vr(fa+4*x+2,2)}, v10 offset:{o+8}")
            r.append(f"ds_read_b128 {vr(fb+4*x,4)}, v11 offset:{512*x + 32*(7-rl)}")
        return r
    for r in rd(0): a(r)
    for it in range(4):
        a("s_waitcnt lgkmcnt(0)")
        nxt = rd(it + 1) if it < 3 else []
        fa = FA[it & 1]; fb = FBm[it & 1]
        k = 0
        for x in range(8):
            for T in range(x, 8):
                d = ACC + 4 * T
                c = "0" if (it == 0 and x == 0) else vr(d, 4)
                a(f"v_mfma_f32_16x16x32_bf16 {vr(d,4)}, {vr(fa+4*x,4)}, {vr(fb+4*(T-x),4)}, {c}")
                if k < len(nxt): a(nxt[k]); k += 1
    st()
    a("s_barrier")
    a("s_lshl_b32 s45, s37, 12")
    a("s_add_u32 s46, s45, s40")
    a("v_add_u32 v12, s46, v3")
    a("s_xor_b32 s45, s45, 4096")
    a("s_add_u32 s46, s45, s40")
    a("v_add_u32 v13, s46, v3")
    a("s_cmp_eq_u32 s37, 1")
    a("s_cbranch_scc1 J3_h1")
    for T in range(4): a(f"ds_write_b128 v12, {vr(ACC+16+4*T,4)} offset:{T*1024}")
    a("s_branch J3_hj")
    a("J3_h1:")
    for T in range(4): a(f"ds_write_b128 v12, {vr(ACC+4*T,4)} offset:{T*1024}")
    a("s_waitcnt lgkmcnt(0)")
    for i in range(16): a(f"v_mov_b32 v{ACC+i}, v{ACC+16+i}")
    a("J3_hj:")
    a("v_lshlrev_b32 v7, 5, v4")
    a("v_lshl_add_u32 v7, v5, 3, v7")
    a("s_lshl_b32 s45, s37, 11")
    a("s_add_u32 s46, s45, s40")
    a("v_add_u32 v14, s46, v7")
    for T in range(4): a(f"ds_read_b64 {vr(64+2*T,2)}, v14 offset:{UO+512+512*T}")
    a("s_waitcnt lgkmcnt(0)")
    a("s_barrier")
    for T in range(4): a(f"ds_read_b128 {vr(48+4*T,4)}, v13 offset:{T*1024}")
    a("s_lshl_b32 s46, s39, 16")
    a("s_and_b32 s47, s39, 0xffff0000")
    a("s_cmp_eq_u32 s36, 0")
    a("s_cselect_b32 s46, s46, s47")
    for T in range(4):
        for h in range(2):
            a(f"v_lshlrev_b32 v{72+4*T+2*h}, 16, v{64+2*T+h}")
            a(f"v_and_b32 v{72+4*T+2*h+1}, 0xffff0000, v{64+2*T+h}")
    a("s_waitcnt lgkmcnt(0)")
    for i in range(16): a(f"v_add_f32 v{ACC+i}, v{ACC+i}, v{48+i}")
    for i in range(16): a(f"v_fma_f32 v{ACC+i}, s46, v{72+i}, v{ACC+i}")
    for i in range(8): a(f"v_cvt_pk_bf16_f32 v{88+i}, v{ACC+2*i}, v{ACC+2*i+1}")
    a("s_lshl_b32 s46, s38, 12")
    a("s_add_u32 s46, s46, s45")
    for T in range(4):
        a(f"buffer_store_dwordx2 {vr(88+2*T,2)}, v7, s[20:23], s46 offen offset:{512*T}")
    a("s_waitcnt vmcnt(0)")
    st()
    st.flush(6, 28, 16)
    a("J3_end:")
    a("s_endpgm")
    return a.text(), 176, 2 * CH

def cmul(a, d, p, m, t):
    if PK:
        a(f"v_pk_mul_f32 {vr(t,2)}, {vr(p,2)}, {vr(m,2)} op_sel:[0,0] op_sel_hi:[1,0]")
        a(f"v_pk_fma_f32 {vr(d,2)}, {vr(p,2)}, {vr(m,2)}, {vr(t,2)} op_sel:[1,1,0] op_sel_hi:[0,1,1] neg_lo:[1,0,0]")
    else:
        a(f"v_mul_f32 v{t}, v{p}, v{m}")
        a(f"v_mul_f32 v{t+1}, v{p+1}, v{m}")
        a(f"v_fma_f32 v{t}, -v{p+1}, v{m+1}, v{t}")
        a(f"v_fma_f32 v{d+1}, v{p}, v{m+1}, v{t+1}")
        if d != t: a(f"v_mov_b32 v{d}, v{t}")

def gen_j2():
    a = Asm(); st = St(a, 0)
    a("s_cmp_ge_u32 s2, 224")
    a("s_cbranch_scc1 J2_end")
    st()
    a(f"s_load_dwordx16 s[40:55], s[0:1], 0")
    a(f"s_load_dwordx4 s[56:59], s[0:1], {KA['wd']}")
    a(f"s_load_dwordx2 s[6:7], s[0:1], {KA['ws']}")
    a("v_lshrrev_b32 v1, 6, v0")
    a("v_and_b32 v2, 63, v0")
    a("v_readfirstlane_b32 s28, v1")
    a("v_lshlrev_b32 v3, 4, v2")
    div7(a, 32, 33, 2, 34)
    a("s_lshr_b32 s36, s28, 1")
    a("s_and_b32 s37, s28, 1")
    a("s_lshl_b32 s38, s2, 1")
    a("s_add_u32 s38, s38, s36")
    a("s_lshl_b32 s34, s2, 2")
    a("s_waitcnt lgkmcnt(0)")
    a("s_load_dword s39, s[54:55], s34")
    a("s_lshl_b32 s34, s38, 9")
    a("s_lshl_b32 s35, s37, 8")
    a("s_add_u32 s34, s34, s35")
    a("v_lshlrev_b32 v4, 2, v2")
    a("v_add_u32 v4, s34, v4")
    PR = 16
    for i in range(6):
        a(f"global_load_dword v{PR+i}, v4, s[{42+2*i}:{43+2*i}]")
    srd(a, 8, 40, 2048*896)
    srd(a, 12, 56, 1792*896)
    srd(a, 16, 58, 896)
    srd(a, 20, 6, WS_END)
    STG = 8704
    TU = 4 * STG
    TW = TU + 8192
    a("v_lshrrev_b32 v5, 3, v2")
    a("v_lshl_add_u32 v5, v1, 4, v5")
    a("v_mul_u32_u24 v5, 896, v5")
    a("v_and_b32 v6, 7, v2")
    a("v_lshl_add_u32 v5, v6, 4, v5")
    a(f"s_mul_i32 s34, s32, {64*896}")
    a("s_lshl_b32 s35, s33, 7")
    a("s_add_u32 s34, s34, s35")
    a(f"s_add_u32 s35, s34, {8*896}")
    a("s_lshl_b32 s29, s28, 11")
    a(f"s_add_u32 m0, s29, {TU}"); a("s_nop 0")
    a("buffer_load_dwordx4 v5, s[8:11], s34 offen lds")
    a(f"s_add_u32 m0, s29, {TU+1024}"); a("s_nop 0")
    a("buffer_load_dwordx4 v5, s[8:11], s35 offen lds")
    a(f"s_add_u32 m0, s29, {TW}"); a("s_nop 0")
    a("buffer_load_dwordx4 v5, s[12:15], s34 offen lds")
    a(f"s_add_u32 m0, s29, {TW+1024}"); a("s_nop 0")
    a("buffer_load_dwordx4 v5, s[12:15], s35 offen lds")
    a("s_lshl_b32 s30, s2, 2")
    a("s_add_u32 s30, s30, s28")
    a("s_mul_i32 s34, s30, 896")
    GX = 24
    a(f"buffer_load_dwordx4 {vr(GX+12,4)}, v3, s[16:19], 0 offen")
    for i in range(3):
        a(f"s_add_u32 s35, s34, {i*896*896}")
        a(f"buffer_load_dwordx4 {vr(GX+4*i,4)}, v3, s[8:11], s35 offen")
    IX = 100
    a("v_lshlrev_b32 v6, 3, v2")
    a("s_lshl_b32 s34, s37, 9")
    a("v_add_u32 v6, s34, v6")
    a(f"s_mul_i32 s35, s36, {2*STG}")
    a("s_add_u32 s35, s35, 16")
    a("s_movk_i32 s31, 128")
    for rnd in range(2):
        for x in range(11):
            r = IX + 11 * rnd + x
            a(f"v_sub_u32 v{r}, {2047 - 1024*rnd - x}, v6")
            a(f"v_max_i32 v7, 0, v{r}")
            a(f"v_cvt_f32_u32 v7, v7")
            a(f"v_cvt_pk_bf16_f32 v7, v7, v7")
            a(f"v_lshrrev_b32 v7, 16, v7")
            a(f"v_subrev_u32 v7, {133*128}, v7")
            a(f"v_min_i32 v{r}, s31, v{r}")
            a(f"v_max_i32 v{r}, v{r}, v7")
            a(f"v_lshl_add_u32 v{r}, v{r}, 2, s35")
    a("s_waitcnt lgkmcnt(0)")
    a("s_lshl_b32 s34, s39, 16")
    a("s_and_b32 s35, s39, 0xffff0000")
    a("s_cmp_eq_u32 s36, 0")
    a("s_cselect_b32 s34, s34, s35")
    a("v_mov_b32 v6, s34")
    a("v_mul_f32 v7, 0x3fb8aa00, v6")
    a("v_rndne_f32 v8, v7")
    a("v_sub_f32 v7, v7, v8")
    a("v_mov_b32 v9, 0x36eca570")
    a("v_fmac_f32 v7, v9, v6")
    a("v_exp_f32 v7, v7")
    a("v_cvt_i32_f32 v8, v8")
    a("v_ldexp_f32 v7, v7, v8")
    a("v_cvt_pk_bf16_f32 v7, v7, v7")
    a("v_and_b32 v15, 0xffff0000, v7")
    a(f"s_mul_i32 s29, s28, {STG}")
    a("v_lshlrev_b32 v12, 2, v2")
    a("v_add_u32 v12, s29, v12")
    a("v_and_b32 v6, 31, v2")
    a("v_mul_u32_u24 v13, 272, v6")
    a("v_lshrrev_b32 v7, 5, v2")
    a("v_lshl_add_u32 v13, v7, 4, v13")
    a("v_add_u32 v13, s29, v13")
    st()
    a("s_waitcnt vmcnt(8)")
    st()
    KACC = 124
    YF = 140
    XF = 172
    AR, AI = 40, 41
    C = 42; E1 = 44; E8 = 46; E256 = 48; T0 = 50; T1 = 52
    W = 56
    PKT = 80
    cnt = [0]
    def put(row, v, conj):
        t = PKT + (cnt[0] & 7); cnt[0] += 1
        a(f"v_cvt_pk_bf16_f32 v{t}, v{v}, {'-' if conj else ''}v{v+1}")
        a(f"ds_write_b32 v12, v{t} offset:{row*272}")
    def direct(dst_list):
        tmp = 88
        for i, (d, m) in enumerate(dst_list):
            a(f"v_mul_f32 v{tmp+3*i}, {float(m)!r}, v{AR}" if m != 256 and m != 8 else f"v_mul_f32 v{tmp+3*i}, 0x{(0x43800000 if m==256 else 0x41000000):x}, v{AR}")
            a(f"v_mul_f32 v{tmp+3*i+1}, {float(m)!r}, v{AI}" if m != 256 and m != 8 else f"v_mul_f32 v{tmp+3*i+1}, 0x{(0x43800000 if m==256 else 0x41000000):x}, v{AI}")
        for i, (d, m) in enumerate(dst_list):
            a(f"v_fract_f32 v{tmp+3*i+1}, v{tmp+3*i+1}")
        for i, (d, m) in enumerate(dst_list):
            a(f"v_exp_f32 v{tmp+3*i}, v{tmp+3*i}")
            a(f"v_sin_f32 v{tmp+3*i+2}, v{tmp+3*i+1}")
            a(f"v_cos_f32 v{tmp+3*i+1}, v{tmp+3*i+1}")
        a("s_nop 0")
        for i, (d, m) in enumerate(dst_list):
            a(f"v_mul_f32 v{d}, v{tmp+3*i}, v{tmp+3*i+1}")
            a(f"v_mul_f32 v{d+1}, v{tmp+3*i}, v{tmp+3*i+2}")
    for rnd in range(2):
        U = 88
        for i in range(6):
            if rnd == 0: a(f"v_lshlrev_b32 v{U+i}, 16, v{PR+i}")
            else: a(f"v_and_b32 v{U+i}, 0xffff0000, v{PR+i}")
        a(f"v_mul_f32 v{AR}, v15, v{U}")
        a(f"v_mul_f32 v{AI}, v15, v{U+1}")
        a(f"v_mul_f32 v{AR}, 0x{LOG2E:x}, v{AR}")
        a(f"v_mul_f32 v{AI}, 0.15915494, v{AI}")
        a(f"v_mul_f32 v{U+2}, v15, v{U+2}")
        a(f"v_mul_f32 v{U+3}, v15, v{U+3}")
        cmul(a, C, U + 4, U + 2, C)
        direct([(E8, 8), (E1, 1), (E256, 256)])
        a(f"v_mov_b32 v{T0}, 0x3f80")
        a(f"ds_write_b32 v12, v{T0}")
        Y = lambda j: W + 2 * (j % 8)
        put(1, E8, False)
        cmul(a, Y(2), E8, E8, Y(2)); put(2, Y(2), False)
        cmul(a, Y(3), Y(2), E8, Y(3))
        Y4 = T1
        cmul(a, Y4, Y(2), Y(2), Y4)
        put(3, Y(3), False); put(4, Y4, False)
        for j in range(5, 32):
            src = E8 if j == 5 else (Y4 if j == 8 else Y(j - 4))
            cmul(a, Y(j), src, Y4, Y(j))
            put(j, Y(j), False)
        for ks in range(8):
            a(f"ds_read_b128 {vr(YF+4*ks,4)}, v13 offset:{ks*32}")
        X = lambda j: W + 2 * j
        put(0, C, True)
        prev = C
        for r in range(1, 8):
            cmul(a, X(r), prev, E1, X(r)); put(r, X(r), True); prev = X(r)
        cmul(a, X(8), C, E256, X(8)); put(8, X(8), True)
        cmul(a, X(9), X(2), E256, X(9)); put(9, X(9), True)
        cmul(a, X(10), X(4), E256, X(10)); put(10, X(10), True)
        cmul(a, X(11), X(6), E256, X(11)); put(11, X(11), True)
        cmul(a, X(1), X(8), E256, X(1)); put(12, X(1), True)
        cmul(a, X(2), X(10), E256, X(2)); put(13, X(2), True)
        cmul(a, X(3), X(1), E256, X(3)); put(14, X(3), True)
        cmul(a, X(4), X(2), E256, X(4)); put(15, X(4), True)
        prev = X(3)
        for r in range(16, 21):
            d = X(5 + (r & 1))
            cmul(a, d, prev, E256, d); put(r, d, True); prev = d
        for ks in range(8):
            a(f"ds_read_b128 {vr(XF+4*ks,4)}, v13 offset:{ks*32}")
        for ks in range(8):
            a(f"s_waitcnt lgkmcnt({7-ks})")
            c = "0" if (rnd == 0 and ks == 0) else vr(KACC, 16)
            a(f"v_mfma_f32_32x32x16_bf16 {vr(KACC,16)}, {vr(XF+4*ks,4)}, {vr(YF+4*ks,4)}, {c}")
    st()
    a("v_and_b32 v6, 31, v2")
    a("v_lshrrev_b32 v7, 5, v2")
    a("s_add_u32 s34, s29, 16")
    a("v_lshlrev_b32 v8, 5, v6")
    a("v_lshl_add_u32 v8, v7, 4, v8")
    a("v_add_u32 v8, s34, v8")
    a("v_cmp_eq_u32 vcc, 1, v7")
    a("v_lshlrev_b32 v9, 4, v6")
    a("v_add_u32 v9, 1024, v9")
    a("v_lshlrev_b32 v10, 3, v6")
    a("v_add_u32 v10, 1536, v10")
    a("v_add_u32 v11, 8, v9")
    a("v_add_u32 v14, 256, v10")
    a("v_cndmask_b32 v9, v9, v10, vcc")
    a("v_cndmask_b32 v10, v11, v14, vcc")
    a("v_add_u32 v9, s34, v9")
    a("v_add_u32 v10, s34, v10")
    a("v_lshlrev_b32 v11, 2, v6")
    a("v_lshl_add_u32 v11, v7, 9, v11")
    a("v_add_u32 v11, s34, v11")
    a("v_mov_b32 v40, 0"); a("v_mov_b32 v41, 0"); a("v_mov_b32 v42, 0"); a("v_mov_b32 v43, 0")
    a("v_mov_b32 v14, s29")
    a("ds_write_b128 v14, v[40:43]")
    a(f"ds_write_b128 v8, {vr(KACC,4)}")
    a(f"ds_write_b64 v9, {vr(KACC+4,2)}")
    a(f"ds_write_b64 v10, {vr(KACC+6,2)}")
    for r in range(4): a(f"ds_write_b32 v11, v{KACC+8+r} offset:{2048+128*r}")
    a("s_waitcnt vmcnt(0) lgkmcnt(0)")
    a("s_barrier")
    GV = 140
    for rnd in range(2):
        for x in range(11):
            a(f"ds_read2st64_b32 {vr(GV+22*rnd+2*x,2)}, v{IX+11*rnd+x} offset0:0 offset1:34")
    a("v_lshrrev_b32 v6, 4, v2")
    a("v_bfe_u32 v7, v2, 2, 2")
    a("v_lshl_add_u32 v8, v6, 3, v7")
    a("v_lshlrev_b32 v8, 7, v8")
    a("v_and_b32 v9, 3, v2")
    a("v_lshl_add_u32 v8, v9, 3, v8")
    a("s_lshl_b32 s34, s28, 5")
    a("v_add_u32 v8, s34, v8")
    TR = 56
    for p in range(2):
        for j in range(2):
            a(f"ds_read_b64_tr_b16 {vr(TR+4*p+2*j,2)}, v8 offset:{TU + p*4096 + j*512}")
    a("v_lshrrev_b32 v10, 5, v2")
    a("v_lshl_add_u32 v10, v10, 2, v7")
    a("v_lshlrev_b32 v10, 7, v10")
    a("v_and_b32 v11, 1, v6")
    a("v_lshl_add_u32 v10, v11, 5, v10")
    a("v_lshl_add_u32 v10, v9, 3, v10")
    a("s_lshl_b32 s34, s28, 11")
    a("v_add_u32 v10, s34, v10")
    for dt in range(2):
        for h in range(2):
            a(f"ds_read_b64_tr_b16 {vr(TR+8+4*dt+2*h,2)}, v10 offset:{TW + dt*64 + h*1024}")
    for i in range(3):
        a(f"v_mov_b32 v{44+i}, 0")
    for e in range(4):
        for i in range(3):
            a(f"v_dot2_f32_bf16 v{44+i}, v{GX+4*i+e}, v{GX+12+e}, v{44+i}")
    a("s_nop 2")
    for pat in ["row_shr:1 row_mask:0xf", "row_shr:2 row_mask:0xf", "row_shr:4 row_mask:0xf", "row_shr:8 row_mask:0xf",
                "row_bcast:15 row_mask:0xa", "row_bcast:31 row_mask:0xc"]:
        for i in range(3):
            a(f"v_add_f32_dpp v{44+i}, v{44+i}, v{44+i} {pat} bank_mask:0xf bound_ctrl:0")
    for i in range(3):
        a(f"v_cvt_pk_bf16_f32 v{44+i}, v{44+i}, v{44+i}")
    for i in range(3): a(f"v_and_b32 v{44+i}, 0xffff0000, v{44+i}")
    for i in range(3): a(f"v_mul_f32 v{44+i}, 0x{NLOG2E:x}, v{44+i}")
    for i in range(3): a(f"v_exp_f32 v{44+i}, v{44+i}")
    for i in range(3): a(f"v_add_f32 v{44+i}, 1.0, v{44+i}")
    for i in range(3): a(f"v_rcp_f32 v{44+i}, v{44+i}")
    for i in range(3): a(f"v_cvt_pk_bf16_f32 v{44+i}, v{44+i}, v{44+i}")
    for i in range(3): a(f"v_and_b32 v{44+i}, 0xffff0000, v{44+i}")
    srd(a, 24, 6, SZ_G, WS_G)
    a("s_lshl_b32 s34, s30, 2")
    a("v_mov_b32 v47, s34")
    a("v_cmp_eq_u32 vcc, 63, v2")
    a("s_and_saveexec_b64 s[60:61], vcc")
    a("s_movk_i32 s35, 7168")
    a("buffer_store_dword v44, v47, s[24:27], 0 offen")
    a("buffer_store_dword v45, v47, s[24:27], 0 offen offset:3584")
    a("buffer_store_dword v46, v47, s[24:27], s35 offen")
    a("s_mov_b64 exec, s[60:61]")
    a("s_waitcnt lgkmcnt(0)")
    a("v_and_b32 v8, 15, v2")
    a("v_lshlrev_b32 v8, 12, v8")
    a("v_lshl_add_u32 v8, v6, 4, v8")
    a("s_lshl_b32 s34, s33, 2"); a("s_add_u32 s34, s34, s28"); a("s_lshl_b32 s34, s34, 16")
    a("s_lshl_b32 s35, s32, 7"); a("s_add_u32 s34, s34, s35"); a(f"s_add_u32 s34, s34, {WS_UT}")
    for p in range(2):
        a(f"buffer_store_dwordx4 {vr(TR+4*p,4)}, v8, s[20:23], s34 offen offset:{64*p}")
    a("s_cmp_ge_u32 s32, 28")
    a("s_cbranch_scc1 J2_nowp")
    a("s_mul_i32 s34, s33, 224"); a("s_lshl_b32 s35, s32, 2"); a("s_add_u32 s34, s34, s35"); a("s_add_u32 s34, s34, s28")
    a("s_lshl_b32 s34, s34, 10"); a(f"s_add_u32 s34, s34, {WS_WP}"); a(f"s_add_u32 s35, s34, {112*1024}")
    a(f"buffer_store_dwordx4 {vr(TR+8,4)}, v3, s[20:23], s34 offen")
    a(f"buffer_store_dwordx4 {vr(TR+12,4)}, v3, s[20:23], s35 offen")
    a("J2_nowp:")
    a(f"s_mul_i32 s34, s38, {KIMG}")
    a("s_lshl_b32 s35, s37, 10")
    a("s_add_u32 s34, s34, s35")
    a(f"s_add_u32 s34, s34, {WS_KI}")
    for rnd in range(2):
        b = GV + 22 * rnd
        for x in range(11): a(f"v_add_f32 v{b+2*x}, v{b+2*x}, v{b+2*x+1}")
        O = 72 + 16 * rnd
        for s in range(4):
            for e in range(4):
                a(f"v_cvt_pk_bf16_f32 v{O+4*s+e}, v{b+2*(s+2*e)}, v{b+2*(s+2*e+1)}")
        for s in range(4):
            a(f"s_add_u32 s35, s34, {s*KCS}")
            a(f"buffer_store_dwordx4 {vr(O+4*s,4)}, v3, s[20:23], s35 offen offset:{rnd*2048}")
    a("v_lshrrev_b32 v8, 2, v2")
    a(f"v_mul_u32_u24 v8, {KCS}, v8")
    a("v_lshl_add_u32 v8, v9, 4, v8")
    a(f"s_mul_i32 s34, s38, {KIMG}")
    a(f"s_add_u32 s34, s34, {WS_KI + 4096}")
    a("v_cmp_gt_u32 vcc, 16, v2")
    a("s_and_saveexec_b64 s[60:61], vcc")
    a("buffer_store_dwordx4 v[40:43], v8, s[20:23], s34 offen")
    a("s_mov_b64 exec, s[60:61]")
    a("s_waitcnt vmcnt(0)")
    st()
    st.flush(6, 28, 16)
    a("J2_end:")
    a("s_endpgm")
    return a.text(), 204, TW + 8192

def main():
    ks = [("prep_kernel", gen_j2(), 256), ("gemm1_kernel", gen_j1(), 512), ("conv_kernel", gen_j3(), 256), ("gemm2_kernel", gen_j4(), 256)]
    s = ""
    for n, (t, vg, lds), blk in ks:
        s += f"; @launch kernel={n} grid=(224,1,1) block=({blk},1,1) lds={lds}\n"
    s += '.amdgcn_target "amdgcn-amd-amdhsa--gfx950"\n.text\n'
    for n, (t, vg, lds), blk in ks:
        s += kernel_head(n) + t
    s += '.section .rodata,"a"\n'
    for n, (t, vg, lds), blk in ks:
        s += kernel_desc(n, vg)
    out = [x for x in sys.argv[1:] if not x.startswith("--")][0]
    open(out, "w").write(s)
main()
```
